```python
import torch

def _softmax(x, axis=-1):
    return torch.softmax(x, dim=axis)

def _gelu(x):
    return torch.nn.functional.gelu(x, approximate='tanh')

def _silu(x):
    return torch.nn.functional.silu(x)

def _sigmoid(x):
    return torch.sigmoid(x)

def _layernorm(x, axis=-1, eps=1e-05):
    m = x.mean(dim=axis, keepdim=True)
    v = x.var(dim=axis, keepdim=True, unbiased=False)
    return (x - m) / torch.sqrt(v + eps)

def _scatter_add(tgt, idx, src, axis=0):
    return tgt.clone().index_add_(axis, idx, src)

def _segment_sum(src, seg, n):
    out = torch.zeros((n,) + src.shape[1:], dtype=src.dtype)
    return out.index_add_(0, seg, src)

def _pad(x, pw):
    flat = tuple((v for pair in reversed(pw) for v in pair))
    return torch.nn.functional.pad(x, flat)
kernel_name = 'standalone__conformer_family_zipformer__speech'

def setup_inputs():

    _w = lambda a: (lambda t: t.to(torch.bfloat16) if t.is_floating_point() else t)(torch.as_tensor(a))
    B, T, D, K, H = (2, 4000, 256, 31, 4)
    sc = 0.1
    return {'x': _w((lambda *s: torch.randn(*s, dtype=torch.bfloat16) * 0.8)(B, T, D)), 'w_ff1a': _w((lambda *s: torch.randn(*s, dtype=torch.bfloat16) * 0.8)(D, 4 * D) * sc), 'w_ff1b': _w((lambda *s: torch.randn(*s, dtype=torch.bfloat16) * 0.8)(4 * D, D) * sc), 'w_qkv': _w((lambda *s: torch.randn(*s, dtype=torch.bfloat16) * 0.8)(D, 3 * D) * sc), 'w_o': _w((lambda *s: torch.randn(*s, dtype=torch.bfloat16) * 1.6)(D, D) * sc), 'w_pw1': _w((lambda *s: torch.randn(*s, dtype=torch.bfloat16) * 1.6)(D, 2 * D) * sc), 'dw': _w((lambda *s: torch.randn(*s, dtype=torch.bfloat16) * 0.4)(K, D)), 'w_pw2': _w((lambda *s: torch.randn(*s, dtype=torch.bfloat16) * 0.4)(D, D) * sc), 'w_ff2a': _w((lambda *s: torch.randn(*s, dtype=torch.bfloat16) * 0.8)(D, 4 * D) * sc), 'w_ff2b': _w((lambda *s: torch.randn(*s, dtype=torch.bfloat16) * 0.8)(4 * D, D) * sc)}

def reference(x, w_ff1a, w_ff1b, w_qkv, w_o, w_pw1, dw, w_pw2, w_ff2a, w_ff2b):
    B, T, D = x.shape
    K = dw.shape[0]
    H = 4
    Dh = D // H
    h = _layernorm(x, axis=-1)
    h = _silu(h @ w_ff1a) @ w_ff1b
    x = x + 0.5 * h
    h = _layernorm(x, axis=-1)
    qkv = h @ w_qkv
    q = (lambda x, *d: x.permute(*d))(qkv[..., :D].reshape(B, T, H, Dh), 0, 2, 1, 3)
    k = (lambda x, *d: x.permute(*d))(qkv[..., D:2 * D].reshape(B, T, H, Dh), 0, 2, 1, 3)
    v = (lambda x, *d: x.permute(*d))(qkv[..., 2 * D:].reshape(B, T, H, Dh), 0, 2, 1, 3)
    scale = Dh ** (-0.5)
    scores = torch.einsum('bhqd,bhkd->bhqk', q, k) * scale
    p = _softmax(scores, axis=-1)
    att = torch.einsum('bhqk,bhkd->bhqd', p, v)
    att = (lambda x, *d: x.permute(*d))(att, 0, 2, 1, 3).reshape(B, T, D)
    x = x + att @ w_o
    h = _layernorm(x, axis=-1)
    h = h @ w_pw1
    a, b = (h[..., :D].clone(), h[..., D:].clone())
    h = a * _sigmoid(b)
    pad = K // 2
    hp = _pad(h, ((0, 0), (pad, pad), (0, 0)))
    c = torch.zeros_like(h)
    for i in range(K):
        c = c + hp[:, i:i + T, :] * dw[i][None, None, :]
    x = x + _silu(c) @ w_pw2
    h = _layernorm(x, axis=-1)
    h = _silu(h @ w_ff2a) @ w_ff2b
    x = x + 0.5 * h
    return _layernorm(x, axis=-1)
```

```python
import re

REG_RE = re.compile(r'(?<![\w.])([vas])(?:\[(\d+):(\d+)\]|(\d+))(?![\w\[])')

def regs_of(tok):
    out = []
    for m in REG_RE.finditer(tok):
        c = m.group(1)
        if m.group(2) is not None:
            out += [(c, i) for i in range(int(m.group(2)), int(m.group(3)) + 1)]
        else:
            out.append((c, int(m.group(4))))
    t = tok.strip()
    if re.search(r'\bvcc\b', t): out += [('s', 'vcc')]
    if re.search(r'\bm0\b', t): out += [('s', 'm0')]
    if re.search(r'\bexec\b', t): out += [('s', 'exec')]
    return out

TRANS = ('v_exp_f32', 'v_log_f32', 'v_rcp_f32', 'v_rsq_f32', 'v_sqrt_f32', 'v_sin_f32', 'v_cos_f32')
NODST_S = ('s_cmp', 's_waitcnt', 's_barrier', 's_nop', 's_cbranch', 's_branch', 's_setprio', 's_endpgm', 's_sleep', 's_bitcmp')

class I:
    __slots__ = ('text', 'op', 'defs', 'uses', 'kind', 'tok', 'waits', 'vm', 'lg', 'nop', 'cuse', 'passes', 'label', 'keep')
    def __init__(self, text, tok=None, waits=()):
        self.text = text; self.tok = tok; self.waits = list(waits)
        self.vm = None; self.lg = None; self.nop = 0; self.cuse = []; self.passes = 0; self.label = False
        t = text.split(';')[0].strip()
        if t.endswith(':') or t.startswith('.') or not t:
            self.op = t; self.defs = []; self.uses = []; self.kind = 'label'; self.label = True; return
        sp = t.split(None, 1)
        op = sp[0]; self.op = op
        rest = sp[1] if len(sp) > 1 else ''
        ops = [x.strip() for x in re.split(r',(?![^\[]*\])', rest)] if rest else []
        R = [regs_of(x) for x in ops]
        flat = lambda l: [r for x in l for r in x]
        base = op.replace('_e64', '').replace('_e32', '')
        if op.startswith(('buffer_load', 'global_load')):
            if re.search(r'\blds\b', rest):
                self.kind = 'vmem_dma'; self.defs = []; self.uses = flat(R) + [('s', 'm0')]
            else:
                self.kind = 'vmem_ld'; self.defs = R[0]; self.uses = flat(R[1:])
        elif op.startswith(('buffer_store', 'global_store', 'buffer_atomic', 'global_atomic', 'buffer_wbl2', 'buffer_inv')):
            self.kind = 'vmem_st'; self.defs = []; self.uses = flat(R)
            if 'atomic' in op and re.search(r'\bsc0\b', rest):
                self.kind = 'vmem_ld'; self.defs = R[0]
        elif op.startswith(('ds_read', 'ds_bpermute', 'ds_swizzle', 'ds_permute')):
            self.kind = 'ds_ld'; self.defs = R[0]; self.uses = flat(R[1:])
        elif op.startswith('ds_'):
            self.kind = 'ds_st'; self.defs = []; self.uses = flat(R)
        elif op.startswith('v_mfma'):
            self.kind = 'mfma'; self.defs = R[0]; self.uses = flat(R[1:]); self.cuse = R[3]
            self.passes = 8 if '32x32' in op else (2 if '4x4' in op else 4)
        elif op.startswith('v_smfmac'):
            self.kind = 'mfma'; self.defs = R[0]; self.uses = flat(R); self.cuse = R[0]
            self.passes = 8 if '32x32' in op else 4
        elif op.startswith('v_'):
            self.kind = 'trans' if base in TRANS else 'valu'
            if base.startswith('v_permlane') and 'swap' in base:
                self.defs = flat(R); self.uses = flat(R)
            elif base.startswith(('v_add_co', 'v_sub_co', 'v_addc_co', 'v_subb_co')):
                self.defs = R[0] + R[1]; self.uses = flat(R[2:])
            elif base.startswith(('v_fmac', 'v_dot2c', 'v_pk_fmac', 'v_writelane')):
                self.defs = R[0]; self.uses = flat(R)
            elif base.startswith('v_nop'):
                self.defs = []; self.uses = []
            else:
                self.defs = R[0]; self.uses = flat(R[1:])
        elif op.startswith(('s_load', 's_memtime', 's_memrealtime', 's_buffer_load')):
            self.kind = 'smem'; self.defs = R[0]; self.uses = flat(R[1:])
        elif op.startswith('s_'):
            self.kind = 'salu'
            if op.startswith(NODST_S):
                self.defs = []; self.uses = flat(R)
            elif 'saveexec' in op:
                self.defs = R[0] + [('s', 'exec')]; self.uses = flat(R[1:]) + [('s', 'exec')]
            elif op.startswith(('s_addk', 's_mulk')):
                self.defs = R[0]; self.uses = flat(R)
            else:
                self.defs = R[0]; self.uses = flat(R[1:])
        else:
            raise ValueError('unknown op ' + text)

    def size(self):
        op = self.op
        if self.label: return 0
        if self.kind in ('vmem_dma', 'vmem_ld', 'vmem_st', 'ds_ld', 'ds_st', 'mfma', 'smem'): return 8
        t = self.text.split(';')[0]
        rest = t.split(None, 1)[1] if ' ' in t.strip() else ''
        lit = False
        for x in re.split(r',(?![^\[]*\])', rest):
            x = x.strip().split()[0] if x.strip() else ''
            if re.fullmatch(r'-?0x[0-9a-fA-F]+', x) or re.fullmatch(r'-?\d+', x):
                val = int(x, 0)
                if not (-16 <= val <= 64):
                    if val not in (0x3f000000, 0xbf000000, 0x3f800000, 0xbf800000, 0x40000000, 0xc0000000, 0x40800000, 0xc0800000, 0x3e22f983): lit = True
        if self.kind == 'salu':
            if op.startswith(('s_waitcnt', 's_nop', 's_barrier', 's_cbranch', 's_branch', 's_endpgm', 's_setprio', 's_sleep', 's_movk', 's_addk', 's_getreg', 's_cmpk')): return 4
            return 8 if lit else 4
        if op.endswith('_e64') or 'sdwa' in op or 'dpp' in op: return 8
        base = op.replace('_e32', '')
        if base in VOP12:
            if lit: return 8
            ops = [x.strip() for x in re.split(r',(?![^\[]*\])', rest)]
            if any(('abs(' in x or x.startswith('-v') or x.startswith('|') or ' mul:' in x or ' div:' in x or 'clamp' in x) for x in ops): return 8
            if base.startswith('v_cmp'):
                return 4 if (ops[0] == 'vcc' and ops[2].startswith('v')) else 8
            if base == 'v_cndmask_b32':
                return 4 if (ops[3] == 'vcc' and ops[2].startswith('v')) else 8
            if len(ops) >= 3 and not ops[2].startswith('v'): return 8
            return 4
        return 8

VOP12 = set('''v_mov_b32 v_add_f32 v_sub_f32 v_subrev_f32 v_mul_f32 v_max_f32 v_min_f32 v_fmac_f32 v_exp_f32 v_log_f32 v_rcp_f32 v_rsq_f32
v_sqrt_f32 v_lshlrev_b32 v_lshrrev_b32 v_ashrrev_i32 v_and_b32 v_or_b32 v_xor_b32 v_add_u32 v_sub_u32 v_subrev_u32 v_mul_u32_u24 v_cndmask_b32
v_readfirstlane_b32 v_cvt_f32_u32 v_cvt_u32_f32 v_permlane16_swap_b32 v_permlane32_swap_b32 v_dot2c_f32_bf16 v_cvt_f32_bf16 v_min_u32 v_max_u32 v_nop
v_cmp_eq_u32 v_cmp_lt_u32 v_cmp_gt_u32 v_cmp_ge_u32 v_cmp_le_u32 v_cmp_ne_u32 v_cmp_nle_f32 v_cmp_gt_f32 v_cmp_lt_f32 v_cmp_nge_f32 v_cmp_ngt_f32 v_cmp_nlt_f32 v_cmp_le_f32 v_cmp_lt_i32 v_cmp_gt_i32 v_cmp_ge_i32'''.split())
E64OK = set('v_mov_b32 v_add_f32 v_sub_f32 v_mul_f32 v_max_f32 v_min_f32 v_exp_f32 v_log_f32 v_rcp_f32 v_rsq_f32 v_lshlrev_b32 v_lshrrev_b32 v_and_b32 v_or_b32 v_xor_b32 v_add_u32 v_sub_u32 v_fmac_f32 v_cndmask_b32'.split())

class Loop:
    def __init__(self, body): self.body = body

class Kern:
    def __init__(self, name):
        self.name = name; self.items = []; self.cur = self.items; self.stack = []
    def e(self, text, tok=None, waits=()):
        i = I(text, tok, waits); self.cur.append(i); return i
    def add(self, lst):
        for x in lst:
            if isinstance(x, I): self.cur.append(x)
            elif isinstance(x, str): self.e(x)
            else: self.add(x)
    def loop_begin(self):
        self.stack.append(self.cur); self.cur = []
    def loop_end(self):
        b = self.cur; self.cur = self.stack.pop(); self.cur.append(Loop(b))
    def fence(self):
        self.e('s_waitcnt vmcnt(0) lgkmcnt(0)'); self.e('s_nop 7'); self.e('s_nop 7')
    def barrier(self):
        self.e('s_barrier', waits=['@lds'])

    def _expand(self, items, rep):
        out = []
        for x in items:
            if isinstance(x, Loop):
                for _ in range(rep): out += self._expand(x.body, rep)
            else: out.append(x)
        return out

    def _waits(self):
        seq = self._expand(self.items, 3)
        vmq = []; lgq = []
        smem = set()
        for ins in seq:
            if ins.label: continue
            if ins.op == 's_waitcnt':
                m = re.search(r'vmcnt\((\d+)\)', ins.text)
                if m:
                    n = int(m.group(1)); vmq = vmq[len(vmq) - n:] if n < len(vmq) else vmq
                    if n == 0: vmq = []
                m = re.search(r'lgkmcnt\((\d+)\)', ins.text)
                if m:
                    n = int(m.group(1)); lgq = lgq[len(lgq) - n:] if n < len(lgq) else lgq
                    if n == 0: lgq = []; smem = set()
                continue
            touched = set(ins.uses) | set(ins.defs)
            if touched & smem: raise ValueError('smem result used without lgkmcnt(0): ' + ins.text)
            nv = None; nl = None
            for q, which in ((vmq, 'v'), (lgq, 'l')):
                need = -1
                for j, (p, d) in enumerate(q):
                    if (d & touched) or (p.tok is not None and p.tok in ins.waits): need = j
                    if which == 'l' and '@lds' in ins.waits: need = j
                    if which == 'v' and '@vm' in ins.waits: need = j
                if need >= 0:
                    n = len(q) - 1 - need
                    if which == 'v': nv = min(n, 63)
                    else: nl = min(n, 15)
            if nv is not None: ins.vm = nv if ins.vm is None else min(ins.vm, nv)
            if nl is not None:
                if smem: nl = 0
                ins.lg = nl if ins.lg is None else min(ins.lg, nl)
            if ins.vm is not None and ins.vm < len(vmq): vmq = vmq[len(vmq) - ins.vm:] if ins.vm else []
            if ins.lg is not None and ins.lg < len(lgq): lgq = lgq[len(lgq) - ins.lg:] if ins.lg else []
            if ins.lg == 0: smem = set()
            if ins.kind.startswith('vmem'): vmq.append((ins, set(ins.defs)))
            elif ins.kind.startswith('ds_'): lgq.append((ins, set(ins.defs)))
            elif ins.kind == 'smem': smem |= set(ins.defs)

    def _materialize_waits(self, items):
        out = []
        for x in items:
            if isinstance(x, Loop):
                out.append(Loop(self._materialize_waits(x.body))); continue
            if x.vm is not None or x.lg is not None:
                t = 's_waitcnt' + (f' vmcnt({x.vm})' if x.vm is not None else '') + (f' lgkmcnt({x.lg})' if x.lg is not None else '')
                out.append(I(t))
            out.append(x)
        return out

    def _hazards(self):
        seq = [x for x in self._expand(self.items, 3) if not x.label]
        hist = []
        pos = 0
        W = 24
        for ins in seq:
            need = 0
            u = set(ins.uses); d = set(ins.defs); cu = set(ins.cuse)
            isv = ins.kind in ('valu', 'trans')
            for (p, ppos) in hist:
                dist = pos - ppos - 1
                if dist >= 20: continue
                pd = set(p.defs); req = 0
                if p.kind in ('valu', 'trans'):
                    vd = {r for r in pd if r[0] in 'va'}; sd = {r for r in pd if r[0] == 's'}
                    if ins.kind == 'mfma' and (vd & u): req = max(req, 2)
                    if p.kind == 'trans' and isv and (vd & u): req = max(req, 1)
                    if ins.op.startswith('v_permlane') and (vd & u): req = max(req, 2)
                    if 'dpp' in ins.op and (vd & u): req = max(req, 2)
                    if ins.op.startswith(('v_readfirstlane', 'v_readlane')) and (vd & u): req = max(req, 1)
                    if sd & u:
                        if isv: req = max(req, 2)
                        if ins.kind.startswith('vmem'): req = max(req, 5)
                        if ins.op.startswith(('v_readlane', 'v_writelane')): req = max(req, 4)
                        if ins.kind == 'salu': req = max(req, 1)
                    if ('sdwa' in p.op or 'op_sel' in p.text) and isv and (vd & (u | d)): req = max(req, 1)
                elif p.kind == 'mfma':
                    k = {2: 0, 4: 1, 8: 2}[p.passes]
                    if ins.kind == 'mfma':
                        ab = u - cu if not ins.op.startswith('v_smfmac') else set(ins.uses[len(ins.defs):])
                        if pd & ab: req = max(req, (5, 8, 12)[k])
                        if pd & cu:
                            if p.defs == ins.cuse and p.passes == ins.passes: req = max(req, (2, 0, 0)[k])
                            else: req = max(req, (4, 6, 10)[k])
                        elif pd & d: req = max(req, (5, 8, 12)[k])
                    elif ins.kind != 'salu' and ins.kind != 'smem':
                        if pd & (u | d): req = max(req, (5, 8, 12)[k])
                        if isv and (set(p.cuse) & d): req = max(req, (1, 3, 7)[k])
                elif p.kind == 'salu':
                    if ('s', 'm0') in pd and ins.kind == 'vmem_dma': req = max(req, 1)
                elif p.kind == 'vmem_st':
                    if ('x4' in p.op or 'x3' in p.op) and (set(p.uses) & d & {r for r in d if r[0] in 'va'}):
                        req = max(req, 2 if isv else 1)
                need = max(need, req - dist)
            if need > ins.nop: ins.nop = need
            pos += ins.nop
            hist.append((ins, pos))
            if ins.op == 's_nop': pos += int(ins.text.split()[1]) + 1
            else: pos += 1
            hist = [h for h in hist if pos - h[1] < W]

    def _materialize_nops(self, items):
        out = []
        for x in items:
            if isinstance(x, Loop):
                out.append(Loop(self._materialize_nops(x.body))); continue
            n = x.nop
            while n > 0:
                k = min(n, 16); out.append(I(f's_nop {k-1}')); n -= k
            x.nop = 0
            out.append(x)
        return out

    def finish(self, align=True):
        self._waits(); self.items = self._materialize_waits(self.items)
        self._hazards(); self.items = self._materialize_nops(self.items)
        flat = self._expand(self.items, 1)
        if align:
            off = 0; last = []
            for x in flat:
                if x.label:
                    if x.op.startswith('.p2align'): off = 0; last = []
                    continue
                z = x.size()
                if z == 8:
                    if off % 8 == 4:
                        for y in reversed(last):
                            if y.op in E64OK:
                                y.text = y.text.replace(y.op, y.op + '_e64', 1); y.op += '_e64'; off += 4; break
                    last = []
                else: last.append(x)
                off += z
        self.flat = flat
        return [x.text for x in flat]

    def stats(self):
        from collections import Counter
        c = Counter(x.kind for x in self.flat if not x.label)
        n = sum(int(x.text.split()[1]) + 1 for x in self.flat if x.op == 's_nop')
        return dict(c), 'nopstates', n, 'bytes', sum(x.size() for x in self.flat)

def cost(x):
    t = x.text if isinstance(x, I) else x
    op = t.split()[0]
    if op.startswith(TRANS) or op.startswith('v_permlane'): return 2
    if op.startswith('buffer_'): return 2
    return 1

def weave(main, fills, lead=0):
    out = []; n = len(main); tot = sum(cost(f) for f in fills); acc = 0; j = 0
    for i, m in enumerate(main):
        out.append(m)
        tgt = tot * (i + 1) / max(1, n - lead)
        while j < len(fills) and acc + cost(fills[j]) / 2 <= tgt:
            out.append(fills[j]); acc += cost(fills[j]); j += 1
    out += fills[j:]
    return out

def descriptor(name, nv=512, acc=256, ns=102):
    return ['.section .rodata,"a"', '.p2align 6', f'.amdhsa_kernel {name}', f'  .amdhsa_next_free_vgpr {nv}', f'  .amdhsa_next_free_sgpr {ns}',
            f'  .amdhsa_accum_offset {acc}', '  .amdhsa_group_segment_fixed_size 0', '  .amdhsa_kernarg_size 104', '  .amdhsa_user_sgpr_count 2',
            '  .amdhsa_user_sgpr_kernarg_segment_ptr 1', '  .amdhsa_system_sgpr_workgroup_id_x 1', '.end_amdhsa_kernel']
def header(name):
    return ['.text', f'.globl {name}', '.p2align 8', f'.type {name},@function', f'{name}:']
```

```python
import struct, math
from asmlib import *

def f32(x): return '0x%08x' % struct.unpack('<I', struct.pack('<f', x))[0]
LOG2E = math.log2(math.e); LN2 = math.log(2.0)

X1_OFF  = 0
Q_OFF   = 4 << 20
KV_OFF  = 8 << 20
M_OFF   = 16 << 20
ATT_OFF = 17 << 20
WS_SIZE = 268435456

NSLOT = 7
RING = NSLOT * 4096
ACT0 = 4 * RING
ACT1 = ACT0 + 16384
STAT = ACT1 + 16384
LDS_ROW = STAT + 2048

def v(i, n=1): return f'v{i}' if n == 1 else f'v[{i}:{i+n-1}]'
def a(i, n=1): return f'a{i}' if n == 1 else f'a[{i}:{i+n-1}]'
def s(i, n=1): return f's{i}' if n == 1 else f's[{i}:{i+n-1}]'

def srd(k, d, src, size):
    k.e(f's_mov_b32 s{d}, s{src}'); k.e(f's_and_b32 s{d+1}, s{src+1}, 0xffff')
    k.e(f's_mov_b32 s{d+2}, {hex(size)}'); k.e(f's_mov_b32 s{d+3}, 0x20000')

class Stream:
    def __init__(self, k, units, s_ring, s_tmp, v_tr, a_w):
        self.k = k; self.units = units; self.s_ring = s_ring; self.s_tmp = s_tmp; self.v_tr = v_tr; self.a_w = a_w
        self.n = len(units) * 8
    def dma(self, st):
        if st >= self.n: return []
        u, ks = divmod(st, 8); sr, va, sb, stride = self.units[u]
        out = [I(f's_add_u32 m0, s{self.s_ring}, {(st % NSLOT) * 4096}'),
               I(f's_add_u32 s{self.s_tmp}, s{sb}, {ks * 32 * stride}')]
        for p in range(4):
            out.append(I(f'buffer_load_dwordx4 v{va+p}, s[{sr}:{sr+3}], s{self.s_tmp} offen offset:{p*1024} lds',
                         tok=f'dma{st}' if p == 3 else None, waits=[f'rd{st-NSLOT}'] if p == 0 else ()))
        return out
    def wf(self, st, nb): return self.a_w + (st & 1) * 16 + nb * 4
    def reads(self, st):
        if st >= self.n: return []
        out = []; base = (st % NSLOT) * 4096
        for nb in range(4):
            r = self.wf(st, nb)
            out.append(I(f'ds_read_b64_tr_b16 a[{r}:{r+1}], v{self.v_tr+nb} offset:{base}', waits=[f'dma{st}'] if nb == 0 else ()))
            out.append(I(f'ds_read_b64_tr_b16 a[{r+2}:{r+3}], v{self.v_tr+nb} offset:{base+2048}', tok=f'rd{st}' if nb == 3 else None))
        return out
    def prime(self):
        for st in range(NSLOT): self.k.add(self.dma(st))
    def unit(self, u, NT, acc, bfrag, init='0', swap=False, fills=(), bread=None):
        fills = list(fills); tot = sum(cost(f) for f in fills); done = 0; j = 0
        for ks in range(8):
            st = u * 8 + ks
            mf = []
            for nb in range(4):
                for tb in range(NT):
                    d = v(acc(nb, tb), 4); c = '0' if (ks == 0 and init == '0') else d
                    w = a(self.wf(st, nb), 4); b = bfrag(ks, tb)
                    mf.append(I(f'v_mfma_f32_16x16x32_bf16 {d}, {b}, {w}, {c}' if swap else f'v_mfma_f32_16x16x32_bf16 {d}, {w}, {b}, {c}'))
            fl = self.dma(st + NSLOT) + self.reads(st + 1)
            if bread is not None and ks < 7: fl += bread(ks + 1)
            tgt = tot * (ks + 1) / 8
            while j < len(fills) and done + cost(fills[j]) / 2 <= tgt:
                fl.append(fills[j]); done += cost(fills[j]); j += 1
            if ks == 7: fl += fills[j:]
            self.k.add(weave(mf, fl))

def setup_lane_regs(k, strides, v_dma, v_tr, v_frd, v_fwr, v_swr, v_srd, v_l16, NTW, s_w=3, s_ring=28):
    k.e('v_lshrrev_b32 v2, 3, v1')
    k.e('v_lshrrev_b32 v3, 4, v1'); k.e('v_lshlrev_b32 v3, 1, v3')
    k.e('v_and_b32 v4, 7, v1'); k.e('v_xor_b32 v4, v4, v3'); k.e('v_lshlrev_b32 v4, 4, v4')
    for i, st in enumerate(strides):
        r = v_dma + 4 * i
        k.e(f'v_mul_u32_u24 v{r}, {st}, v2'); k.e(f'v_add_u32 v{r}, v{r}, v4')
        for p in range(1, 4): k.e(f'v_add_u32 v{r+p}, {p * (8 * st - 1024)}, v{r}')
    k.e(f's_mul_i32 s{s_ring}, s{s_w}, {RING}')
    k.e('v_lshrrev_b32 v2, 2, v1')
    k.e('v_lshrrev_b32 v3, 1, v2'); k.e('v_and_b32 v3, 3, v3')
    k.e('v_and_b32 v4, 3, v1'); k.e('v_lshlrev_b32 v4, 3, v4')
    k.e('v_lshlrev_b32 v5, 7, v2'); k.e('v_add_u32 v5, v5, v4'); k.e(f'v_add_u32 v5, s{s_ring}, v5')
    for nb in range(4):
        k.e(f'v_xor_b32 v6, {nb}, v3'); k.e('v_lshlrev_b32 v6, 5, v6'); k.e(f'v_add_u32 v{v_tr+nb}, v5, v6')
    k.e(f'v_lshlrev_b32 v{v_l16}, 4, v1')
    k.e(f'v_add_u32 v{v_frd}, {ACT0}, v{v_l16}')
    for i, nt in enumerate(NTW):
        k.e(f's_mul_i32 s29, s{s_w}, {2 * nt * 1024}'); k.e(f'v_add_u32 v{v_fwr+i}, s29, v{v_frd}')
    k.e(f's_lshl_b32 s29, s{s_w}, 2'); k.e(f's_add_u32 s29, s29, {STAT}'); k.e(f'v_add_u32 v{v_swr}, s29, v{v_l16}')
    k.e('v_and_b32 v2, 15, v1'); k.e('v_lshlrev_b32 v2, 4, v2'); k.e(f'v_add_u32 v{v_srd}, {STAT}, v2')

def ln_stats(k, X, NT, T, v_swr, v_srd, scale=None):
    for tb in range(NT):
        s1, s2 = T + 2 * tb, T + 2 * tb + 1
        regs = [X(nb, tb) + r for nb in range(4) for r in range(4)]
        k.e(f'v_add_f32 v{s1}, v{regs[0]}, v{regs[1]}'); k.e(f'v_mul_f32 v{s2}, v{regs[0]}, v{regs[0]}')
        k.e(f'v_fmac_f32 v{s2}, v{regs[1]}, v{regs[1]}')
        for x in regs[2:]:
            k.e(f'v_add_f32 v{s1}, v{s1}, v{x}'); k.e(f'v_fmac_f32 v{s2}, v{x}, v{x}')
    for tb in range(NT):
        k.e(f'v_permlane32_swap_b32 v{T+2*tb}, v{T+2*tb+1}')
    for tb in range(NT):
        k.e(f'v_add_f32 v{T+2*tb}, v{T+2*tb}, v{T+2*tb+1}')
    for p in range(NT // 2):
        k.e(f'v_permlane16_swap_b32 v{T+4*p}, v{T+4*p+2}')
    for p in range(NT // 2):
        k.e(f'v_add_f32 v{T+4*p}, v{T+4*p}, v{T+4*p+2}')
        k.e(f'ds_write_b32 v{v_swr}, v{T+4*p} offset:{p*1024}')
    k.barrier()
    R = T + 8
    for p in range(NT // 2):
        for row in range(4):
            k.e(f'ds_read_b128 v[{R+16*p+4*row}:{R+16*p+4*row+3}], v{v_srd} offset:{p*1024+row*256}')
    for tb in range(NT):
        p, h = divmod(tb, 2)
        a1 = R + 16 * p + 4 * h; a2 = a1 + 8
        for b in (a1, a2):
            k.e(f'v_add_f32 v{b}, v{b}, v{b+1}'); k.e(f'v_add_f32 v{b+2}, v{b+2}, v{b+3}'); k.e(f'v_add_f32 v{b}, v{b}, v{b+2}')
        k.e(f'v_mul_f32 v{a1}, {f32(1/256)}, v{a1}')
        k.e(f'v_mul_f32 v{a2}, {f32(1/256)}, v{a2}')
        k.e(f'v_fma_f32 v{a2}, -v{a1}, v{a1}, v{a2}')
        k.e(f'v_max_f32 v{a2}, 0, v{a2}')
        k.e(f'v_add_f32 v{a2}, {f32(1e-5)}, v{a2}')
        k.e(f'v_rsq_f32 v{T+2*tb}, v{a2}')
        if scale is not None: k.e(f'v_mul_f32 v{T+2*tb}, {f32(scale)}, v{T+2*tb}')
        k.e(f'v_mul_f32 v{T+2*tb+1}, v{a1}, v{T+2*tb}')
        k.e(f'v_sub_f32 v{T+2*tb+1}, 0, v{T+2*tb+1}')
    return (lambda tb: T + 2 * tb), (lambda tb: T + 2 * tb + 1)

def ln_to_frags(k, X, NT, T, v_swr, v_srd, v_fwr, v_frd, buf, a_xn, scale=None):
    rs, nm = ln_stats(k, X, NT, T, v_swr, v_srd, scale)
    Y = T + 8
    for tb in range(NT):
        for j in range(2):
            y = Y + 12 * ((tb * 2 + j) & 1)
            for h in range(2):
                for r in range(4): k.e(f'v_fma_f32 v{y+4*h+r}, v{X(2*j+h,tb)+r}, v{rs(tb)}, v{nm(tb)}')
            for q in range(4): k.e(f'v_cvt_pk_bf16_f32 v{y+8+q}, v{y+2*q}, v{y+2*q+1}')
            k.e(f'ds_write_b128 v{v_fwr}, v[{y+8}:{y+11}] offset:{buf - ACT0 + (j * NT + tb) * 1024}')
    k.barrier()
    for ks in range(8):
        for tb in range(NT):
            r = a_xn + (ks * NT + tb) * 4
            k.e(f'ds_read_b128 a[{r}:{r+3}], v{v_frd} offset:{buf - ACT0 + (ks * NT + tb) * 1024}')

def silu_fill(acc, NT, T, v_fwr, buf):
    out = []
    for tb in range(NT):
        for j in range(2):
            g = (tb * 2 + j) & 1
            F = T + 8 + 4 * g
            for h in range(2):
                x = acc(2 * j + h, tb); t = T + 4 * h
                out += [I(f'v_exp_f32 v{t+r}, v{x+r}') for r in range(4)]
                out += [I(f'v_add_f32 v{t+r}, 1.0, v{t+r}') for r in range(4)]
                out += [I(f'v_rcp_f32 v{t+r}, v{t+r}') for r in range(4)]
                out += [I(f'v_mul_f32 v{t+r}, v{x+r}, v{t+r}') for r in range(4)]
                out += [I(f'v_cvt_pk_bf16_f32 v{F+2*h+q}, v{t+2*q}, v{t+2*q+1}') for q in range(2)]
            out.append(I(f'ds_write_b128 v{v_fwr}, v[{F}:{F+3}] offset:{buf - ACT0 + (j * NT + tb) * 1024}'))
    return out

def ffn(k, st, u0, NT, a_xn, a_hb, acc1a, acc1b, acc2, T, v_fwr, v_frd, bufA, bufB):
    A1 = [lambda nb, tb, b=b: b + (nb * NT + tb) * 4 for b in (acc1a, acc1b)]
    A2 = lambda nb, tb: acc2 + (nb * NT + tb) * 4
    xn = lambda ks, tb: a(a_xn + (ks * NT + tb) * 4, 4)
    hb = lambda ks, tb: a(a_hb + ((ks & 1) * NT + tb) * 4, 4)
    def br(buf):
        return lambda ks: [I(f'ds_read_b128 {hb(ks,tb)}, v{v_frd} offset:{buf - ACT0 + (ks * NT + tb) * 1024}') for tb in range(NT)]
    buf = lambda j: bufA if j % 2 == 0 else bufB
    sil = lambda j: silu_fill(A1[j & 1], NT, T, v_fwr, buf(j))
    st.unit(u0 + 0, NT, A1[0], xn)
    st.unit(u0 + 1, NT, A1[1], xn, fills=sil(0)); k.barrier(); k.add(br(buf(0))(0))
    st.unit(u0 + 2, NT, A2, hb, fills=sil(1), bread=br(buf(0)))
    st.unit(u0 + 3, NT, A1[0], xn); k.barrier(); k.add(br(buf(1))(0))
    st.unit(u0 + 4, NT, A2, hb, init='acc', fills=sil(2), bread=br(buf(1)))
    st.unit(u0 + 5, NT, A1[1], xn); k.barrier(); k.add(br(buf(2))(0))
    st.unit(u0 + 6, NT, A2, hb, init='acc', fills=sil(3), bread=br(buf(2))); k.barrier(); k.add(br(buf(3))(0))
    st.unit(u0 + 7, NT, A2, hb, init='acc', bread=br(buf(3)))
    return A2

def ff_unit_bases(k, s0, s_rot, s_w, s_t):
    order = [('A', 0), ('A', 1), ('B', 0), ('A', 2), ('B', 1), ('A', 3), ('B', 2), ('B', 3)]
    for i, (t, j) in enumerate(order):
        k.e(f's_add_u32 s{s_t}, s{s_rot}, {j}'); k.e(f's_and_b32 s{s_t}, s{s_t}, 3')
        k.e(f's_lshl_b32 s{s_t}, s{s_t}, {9 if t == "A" else 17}')
        k.e(f's_lshl_b32 s{s0+i}, s{s_w}, 7'); k.e(f's_add_u32 s{s0+i}, s{s0+i}, s{s_t}')
    return order

def l2_prefetch(k, lst, vt, vd, s_t):
    k.e(f's_lshr_b32 s{s_t}, s2, 3'); k.e(f's_and_b32 s{s_t}, s{s_t}, 31')
    k.e(f'v_lshlrev_b32 v{vt}, 7, v0')
    for i, (sr, nbytes) in enumerate(lst):
        sl = nbytes // 32
        assert sl % 128 == 0 and sl <= 32768
        k.e(f's_mul_i32 s{s_t+1}, s{s_t}, {sl}')
        k.e(f'v_min_u32 v{vt+1}, {sl - 128}, v{vt}')
        k.e(f'buffer_load_dword v{vd+i}, v{vt+1}, s[{sr}:{sr+3}], s{s_t+1} offen')
```

```python
from common import *

def gen_k1(name='k1_kernel', prefetch=True):
    k = Kern(name); NT = 2
    S_X, S_A, S_B, S_Q, S_WS = 8, 12, 16, 20, 24
    V_DMA, V_TR, V_FRD, V_FWR, V_SWR, V_SRD, V_L16, V_MO = 10, 22, 26, 27, 28, 29, 30, 31
    VX, ACC1A, ACC1B, ACC2, T, PK = 32, 64, 96, 128, 160, 208
    A_XN, A_W, A_HB = 0, 64, 96
    k.e('s_cmp_ge_u32 s2, 250'); k.e(f's_cbranch_scc1 {name}_end')
    k.e('s_load_dwordx4 s[44:47], s[0:1], 0'); k.e('s_load_dwordx4 s[48:51], s[0:1], 16'); k.e('s_load_dwordx2 s[52:53], s[0:1], 96')
    k.e('v_and_b32 v1, 63, v0'); k.e('v_lshrrev_b32 v2, 6, v0'); k.e('v_readfirstlane_b32 s3, v2')
    k.e('v_and_b32 v7, 15, v1'); k.e('v_lshlrev_b32 v7, 9, v7')
    k.e('v_bfe_u32 v8, v1, 4, 1'); k.e('v_lshl_add_u32 v7, v8, 5, v7')
    k.e('v_lshrrev_b32 v8, 5, v1'); k.e('v_lshl_add_u32 v7, v8, 4, v7')
    k.e('s_lshl_b32 s4, s3, 7'); k.e('s_lshl_b32 s5, s2, 14'); k.e('s_add_u32 s4, s4, s5'); k.e('s_add_u32 s5, s4, 8192')
    setup_lane_regs(k, [2048, 512, 1536], V_DMA, V_TR, V_FRD, V_FWR, V_SWR, V_SRD, V_L16, [NT])
    k.e('s_lshr_b32 s6, s2, 3'); k.e('s_and_b32 s6, s6, 3')
    order = ff_unit_bases(k, 30, 6, 3, 29)
    for j in range(3):
        k.e(f's_lshl_b32 s{38+j}, s3, 7')
        if j: k.e(f's_add_u32 s{38+j}, s{38+j}, {512*j}')
    k.e('s_waitcnt lgkmcnt(0)')
    srd(k, S_X, 44, 4096000); srd(k, S_A, 46, 524288); srd(k, S_B, 48, 524288); srd(k, S_Q, 50, 393216); srd(k, S_WS, 52, WS_SIZE)
    for tb in range(NT):
        for p in range(2):
            r = ACC1A + (tb * 2 + p) * 4
            k.e(f'buffer_load_dwordx4 v[{r}:{r+3}], v7, s[{S_X}:{S_X+3}], s{4+tb} offen offset:{64*p}')
    units = [((S_A, V_DMA, 30 + i, 2048) if t == 'A' else (S_B, V_DMA + 4, 30 + i, 512)) for i, (t, j) in enumerate(order)]
    units += [(S_Q, V_DMA + 8, 38 + j, 1536) for j in range(3)]
    st = Stream(k, units, 28, 29, V_TR, A_W)
    st.prime()
    if prefetch: l2_prefetch(k, [(S_A, 524288), (S_B, 524288), (S_Q, 393216)], 8, 250, 42)
    k.e('s_cmp_ge_u32 s2, 125'); k.e('s_cselect_b32 s54, 1, 0'); k.e('s_mul_i32 s55, s54, 125'); k.e('s_sub_u32 s55, s2, s55')
    k.e('s_lshl_b32 s56, s54, 2'); k.e('s_add_u32 s56, s56, s3')
    k.e('s_mul_i32 s57, s56, 125'); k.e('s_add_u32 s57, s57, s55')
    k.e('s_lshl_b32 s58, s57, 12'); k.e(f's_add_u32 s58, s58, {Q_OFF}')
    k.e('s_lshl_b32 s59, s57, 13'); k.e(f's_add_u32 s59, s59, {KV_OFF}')
    k.e('s_add_u32 s60, s59, 4096')
    k.e('s_lshl_b32 s61, s57, 7'); k.e(f's_add_u32 s61, s61, {M_OFF}')
    k.e('s_lshl_b32 s62, s2, 14'); k.e('s_lshl_b32 s63, s3, 11'); k.e('s_add_u32 s62, s62, s63'); k.e(f's_add_u32 s62, s62, {X1_OFF}'); k.e('s_add_u32 s63, s62, 8192')
    k.e(f'v_lshrrev_b32 v{V_MO}, 5, v1'); k.e(f'v_lshlrev_b32 v{V_MO}, 4, v{V_MO}'); k.e('v_and_b32 v2, 15, v1')
    k.e(f'v_add_u32 v{V_MO}, v{V_MO}, v2'); k.e(f'v_lshlrev_b32 v{V_MO}, 2, v{V_MO}')
    X = lambda nb, tb: VX + (nb * NT + tb) * 4
    k.e('s_mov_b32 s43, 0xffff0000')
    for tb in range(NT):
        for p in range(2):
            r = ACC1A + (tb * 2 + p) * 4
            k.e(f'v_permlane16_swap_b32 v{r}, v{r+2}'); k.e(f'v_permlane16_swap_b32 v{r+1}, v{r+3}')
            for h in range(2):
                for q in range(2):
                    k.e(f'v_lshlrev_b32 v{X(2*p+h,tb)+2*q}, 16, v{r+2*h+q}'); k.e(f'v_and_b32 v{X(2*p+h,tb)+2*q+1}, s43, v{r+2*h+q}')
    k.add(st.reads(0))
    ln_to_frags(k, X, NT, T, V_SWR, V_SRD, V_FWR, V_FRD, ACT0, A_XN, scale=-LOG2E)
    A2 = ffn(k, st, 0, NT, A_XN, A_HB, ACC1A, ACC1B, ACC2, T, V_FWR, V_FRD, ACT1, ACT0)
    k.e(f's_mov_b32 s43, {f32(-0.5 * LN2)}')
    for tb in range(NT):
        for nb in range(4):
            for r in range(4): k.e(f'v_fmac_f32 v{X(nb,tb)+r}, s43, v{A2(nb,tb)+r}')
    k.e('s_mov_b32 s43, 0xffff0000')
    for tb in range(NT):
        for hf in range(2):
            P = PK + (tb * 2 + hf) * 4
            for h in range(2):
                for q in range(2):
                    k.e(f'v_cvt_pk_bf16_f32 v{P+2*h+q}, v{X(2*hf+h,tb)+2*q}, v{X(2*hf+h,tb)+2*q+1}')
            k.e(f'buffer_store_dwordx4 v[{P}:{P+3}], v{V_L16}, s[{S_WS}:{S_WS+3}], s{62+tb} offen offset:{hf*1024}')
    ln_to_frags(k, X, NT, T, V_SWR, V_SRD, V_FWR, V_FRD, ACT1, A_XN)
    xn = lambda ks, tb: a(A_XN + (ks * NT + tb) * 4, 4)
    AQ = lambda nb, tb: ACC1A + (nb * NT + tb) * 4
    AK = lambda nb, tb: ACC1B + (nb * NT + tb) * 4
    AV = lambda nb, tb: ACC2 + (nb * NT + tb) * 4
    PQ = lambda tb, ks: PK + (tb * 2 + ks) * 4
    PKK = lambda tb, ks: PK + 16 + (tb * 2 + ks) * 4
    def qk_epi(A, P, sreg, scale):
        out = []
        for tb in range(NT):
            for ks in range(2):
                for h in range(2):
                    x = A(2 * ks + h, tb)
                    if scale: out += [I(f'v_mul_f32 v{x+r}, s43, v{x+r}') for r in range(4)]
                    out += [I(f'v_cvt_pk_bf16_f32 v{P(tb,ks)+2*h+q}, v{x+2*q}, v{x+2*q+1}') for q in range(2)]
                out.append(I(f'buffer_store_dwordx4 v[{P(tb,ks)}:{P(tb,ks)+3}], v{V_L16}, s[{S_WS}:{S_WS+3}], s{sreg} offen offset:{(tb*2+ks)*1024}'))
        return out
    k.e(f's_mov_b32 s43, {f32(0.125 * LOG2E)}')
    st.unit(8, NT, AQ, xn)
    st.unit(9, NT, AK, xn, fills=qk_epi(AQ, PQ, 58, True))
    f = qk_epi(AK, PKK, 59, False)
    S = lambda kb, qb: T + (qb * 2 + kb) * 4
    for ks in range(2):
        for kb in range(2):
            for qb in range(2):
                c = '0' if ks == 0 else v(S(kb, qb), 4)
                f.append(I(f'v_mfma_f32_16x16x32_bf16 {v(S(kb,qb),4)}, {v(PKK(kb,ks),4)}, {v(PQ(qb,ks),4)}, {c}'))
    for qb in range(2):
        b = T + 8 * qb
        f += [I(f'v_max3_f32 v{b}, v{b}, v{b+1}, v{b+2}'), I(f'v_max3_f32 v{b+3}, v{b+3}, v{b+4}, v{b+5}'),
              I(f'v_max3_f32 v{b}, v{b}, v{b+6}, v{b+7}'), I(f'v_max_f32 v{b}, v{b}, v{b+3}')]
    f += [I(f'v_permlane32_swap_b32 v{T}, v{T+8}'), I(f'v_max_f32 v{T}, v{T}, v{T+8}'), I(f'v_mov_b32 v{T+1}, v{T}'),
          I(f'v_permlane16_swap_b32 v{T}, v{T+1}'), I(f'v_max_f32 v{T}, v{T}, v{T+1}'), I(f'v_sub_f32 v{T}, 0, v{T}'),
          I(f'buffer_store_dword v{T}, v{V_MO}, s[{S_WS}:{S_WS+3}], s61 offen')]
    st.unit(10, NT, AV, xn, swap=True, fills=f)
    for db in range(4):
        P = ACC1A + db * 4
        for tb in range(NT):
            for q in range(2): k.e(f'v_cvt_pk_bf16_f32 v{P+2*tb+q}, v{AV(db,tb)+2*q}, v{AV(db,tb)+2*q+1}')
        k.e(f'buffer_store_dwordx4 v[{P}:{P+3}], v{V_L16}, s[{S_WS}:{S_WS+3}], s60 offen offset:{db*1024}')
    k.e(f'{name}_end:')
    k.e('s_endpgm')
    return k

if __name__ == '__main__':
    k = gen_k1(); t = k.finish(); print(k.stats())
```

```python
from common import *

LDS_ATT = 12 * 9216 + 1024
FLAG = 12 * 9216

def gen_k2(name='k2_kernel', thr=2.0**30):
    k = Kern(name)
    S_WS = 8
    V_L16 = 2
    KV = [16, 48]; NM = 80; S = [112, 128]; E = 144; P = [160, 168]; ON = 176; IDX = 180; T = 184
    A_O, A_Q, A_L = 0, 128, 192
    k.e('s_cmp_ge_u32 s2, 256'); k.e(f's_cbranch_scc1 {name}_end')
    k.e('s_load_dwordx2 s[4:5], s[0:1], 96')
    k.e('v_and_b32 v1, 63, v0'); k.e('v_lshrrev_b32 v3, 6, v0'); k.e('v_readfirstlane_b32 s3, v3')
    k.e(f'v_lshlrev_b32 v{V_L16}, 4, v1')
    k.e('v_and_b32 v3, 15, v1'); k.e('v_lshlrev_b32 v3, 2, v3')
    k.e('s_and_b32 s12, s2, 7'); k.e('s_lshr_b32 s13, s2, 3')
    for j in range(4):
        k.e(f's_add_u32 s14, s3, {j}'); k.e('s_and_b32 s14, s14, 3'); k.e('s_lshl_b32 s14, s14, 1')
        k.e('s_lshl_b32 s15, s13, 3'); k.e('s_add_u32 s14, s14, s15'); k.e(f's_min_u32 s{16+j}, s14, 248')
        if j == 0: k.e('s_mov_b32 s33, s14')
    k.e('s_mul_i32 s14, s12, 250')
    for j in range(4):
        k.e(f's_add_u32 s15, s14, s{16+j}')
        k.e(f's_lshl_b32 s{20+j}, s15, 11'); k.e(f's_add_u32 s{20+j}, s{20+j}, {Q_OFF}')
        k.e(f's_lshl_b32 s{24+j}, s15, 6'); k.e(f's_add_u32 s{24+j}, s{24+j}, {M_OFF}')
    k.e('s_mul_i32 s14, s12, 125'); k.e('s_add_u32 s15, s14, 124'); k.e('s_lshl_b32 s28, s15, 13'); k.e(f's_add_u32 s28, s28, {KV_OFF}')
    k.e('s_mul_i32 s15, s3, 31'); k.e('s_add_u32 s14, s14, s15'); k.e('s_lshl_b32 s29, s14, 13'); k.e(f's_add_u32 s29, s29, {KV_OFF}')
    k.e(f's_add_u32 s30, s29, {31 * 8192}')
    k.e('s_cmp_eq_u32 s13, 31'); k.e('s_cselect_b32 s14, 0, s13'); k.e('s_lshl_b32 s14, s14, 13'); k.e('s_add_u32 s34, s29, s14')
    k.e('s_lshr_b32 s14, s12, 2'); k.e('s_mul_i32 s14, s14, 250'); k.e('s_add_u32 s14, s14, s16'); k.e('s_lshl_b32 s35, s14, 13')
    k.e('s_and_b32 s14, s12, 3'); k.e('s_lshl_b32 s14, s14, 11'); k.e('s_add_u32 s35, s35, s14'); k.e(f's_add_u32 s35, s35, {ATT_OFF}')
    k.e('s_add_u32 s36, s35, 8192')
    k.e('s_waitcnt lgkmcnt(0)')
    srd(k, S_WS, 4, WS_SIZE)
    ws = f's[{S_WS}:{S_WS+3}]'
    def ldK(buf, so): return [I(f'buffer_load_dwordx4 {v(KV[buf]+4*i,4)}, v{V_L16}, {ws}, s{so} offen offset:{i*1024}', tok=f'K{buf}' if i == 3 else None) for i in range(4)]
    def ldV(buf, so): return [I(f's_add_u32 s14, s{so}, 4096')] + [I(f'buffer_load_dwordx4 {v(KV[buf]+16+4*i,4)}, v{V_L16}, {ws}, s14 offen offset:{i*1024}', tok=f'V{buf}' if i == 3 else None) for i in range(4)]
    def adv(): return [I('s_add_u32 s31, s31, 8192'), I('s_cmp_eq_u32 s31, s30'), I('s_cselect_b32 s31, s29, s31')]
    for j in range(4):
        for qb in range(2): k.e(f'buffer_load_dword v{T+2*j+qb}, v3, {ws}, s{24+j} offen offset:{qb*64}')
    for j in range(4):
        for i in range(4): k.e(f'buffer_load_dwordx4 {a(A_Q+16*j+4*i,4)}, v{V_L16}, {ws}, s{20+j} offen offset:{i*1024}')
    k.e('v_lshrrev_b32 v4, 1, v1'); k.e('v_lshrrev_b32 v5, 5, v1'); k.e('v_xor_b32 v4, v4, v5'); k.e('v_and_b32 v4, 1, v4')
    k.e('v_cmp_eq_u32 vcc, 0, v4'); k.e('v_mov_b32 v5, 0x3f803f80')
    for r in range(4): k.e(f'v_cndmask_b32 v{ON+r}, 0, v5, vcc')
    k.e('v_and_b32 v4, 1, v1'); k.e('v_cmp_eq_u32 vcc, 0, v4'); k.e('v_mov_b32 v5, 0x44444444'); k.e('v_mov_b32 v6, 0xeeeeeeee')
    k.e(f'v_cndmask_b32 v{IDX}, v6, v5, vcc')
    for j in range(1, 4):
        k.e(f's_add_u32 s14, s3, {j}'); k.e('s_and_b32 s14, s14, 3'); k.e(f's_mul_i32 s14, s14, {3*9216}'); k.e(f's_add_u32 s14, s14, {(j-1)*9216}')
        k.e(f'v_add_u32 v{6+j}, s14, v{V_L16}')
    k.e(f's_mul_i32 s14, s3, {3*9216}'); k.e(f'v_add_u32 v10, s14, v{V_L16}')
    k.e('s_lshl_b32 s14, s3, 2'); k.e(f's_add_u32 s14, s14, {FLAG}'); k.e('v_mov_b32 v11, s14'); k.e(f'v_mov_b32 v12, {FLAG}')
    for j in range(4):
        for qb in range(2):
            for r in range(4): k.e(f'v_mov_b32 v{NM+8*j+4*qb+r}, v{T+2*j+qb}')
    k.e('s_mov_b32 s37, 0')
    k.e(f'{name}_main:')
    k.e('s_mov_b32 s31, s34')
    k.add(ldK(1, 28)); k.add(ldK(0, 31)); k.add(ldV(1, 28)); k.add(ldV(0, 31)); k.add(adv())
    for r in list(range(A_O, A_O + 128)) + list(range(A_L, A_L + 16)): k.e(f'v_accvgpr_write_b32 a{r}, 0')

    def qk(buf, j, ph):
        out = []
        for ks in range(2):
            for kb in range(2):
                for qb in range(2):
                    d = S[ph] + 4 * (2 * qb + kb); c = v(NM + 8 * j + 4 * qb, 4) if ks == 0 else v(d, 4)
                    out.append(I(f'v_mfma_f32_16x16x32_bf16 {v(d,4)}, {v(KV[buf]+8*kb+4*ks,4)}, {a(A_Q+16*j+8*qb+4*ks,4)}, {c}', waits=[f'K{buf}']))
        return out
    def pv(buf, j, ph):
        out = []
        for db in range(4):
            for qb in range(2):
                o = a(A_O + 32 * j + 4 * (2 * db + qb), 4)
                out.append(I(f'v_mfma_f32_16x16x32_bf16 {o}, {v(KV[buf]+16+4*db,4)}, {v(P[ph]+4*qb,4)}, {o}', waits=[f'V{buf}']))
        out.append(I(f'v_smfmac_f32_16x16x64_bf16 {a(A_L+4*j,4)}, {v(ON,4)}, {v(P[ph],8)}, v{IDX}'))
        return out
    def exps(ph): return [I(f'v_exp_f32 v{E+i}, v{S[ph]+i}') for i in range(16)]
    def cvts(ph): return [I(f'v_cvt_pk_bf16_f32 v{P[ph]+i}, v{E+2*i}, v{E+2*i+1}') for i in range(8)]
    def slot(mf, smph, extra=()):
        extra = list(extra)
        if smph is None:
            return weave(mf, extra)
        ex = exps(smph); cv = cvts(smph); out = []; n = len(mf); ei = 0; ci = 0; xi = 0
        per = -(-16 // min(n, 16))
        for i, m in enumerate(mf):
            out.append(m)
            for _ in range(per):
                if ei < 16: out.append(ex[ei]); ei += 1
            while ci < 6 and 2 * ci + 3 < ei and ci < (i + 1) * 6 // max(1, n - 1) : out.append(cv[ci]); ci += 1
            if xi < len(extra) and i % 2 == 1:
                out.append(extra[xi]); xi += 1
                while xi < len(extra) and extra[xi - 1].kind == 'salu': out.append(extra[xi]); xi += 1
        out += ex[ei:] + extra[xi:] + cv[ci:]
        return out
    k.add(slot(qk(1, 0, 1), None))
    def block(buf, first=False):
        o = 1 - buf
        if first:
            k.add(slot(qk(buf, 0, 0), 1, ldK(o, 31)))
            k.add(slot(qk(buf, 1, 1) + pv(o, 0, 1), 0))
        else:
            k.add(slot(qk(buf, 0, 0) + pv(o, 2, 0), 1, ldK(o, 31)))
            k.add(slot(qk(buf, 1, 1) + pv(o, 3, 1), 0))
        k.add(slot(qk(buf, 2, 0) + pv(buf, 0, 0), 1, ldV(o, 31) + adv()))
        k.add(slot(qk(buf, 3, 1) + pv(buf, 1, 1), 0))
    block(0, first=True)
    k.e('s_mov_b32 s32, 15')
    k.e('.p2align 3')
    k.loop_begin()
    k.e(f'{name}_loop:')
    block(1); block(0)
    k.e('s_sub_u32 s32, s32, 1'); k.e('s_cmp_lg_u32 s32, 0'); k.e(f's_cbranch_scc1 {name}_loop')
    k.loop_end()
    k.add(slot(pv(0, 2, 0), 1)); k.add(pv(0, 3, 1))
    for j in range(1, 4):
        for i in range(8): k.e(f'ds_write_b128 v{6+j}, {a(A_O+32*j+4*i,4)} offset:{i*1024}')
        k.e(f'ds_write_b128 v{6+j}, {a(A_L+4*j,4)} offset:8192')
    for r in range(16): k.e(f'v_accvgpr_read_b32 v{T+r}, a{A_L+r}')
    k.e(f'v_add_f32 v{T+16}, v{T}, v{T+1}')
    for r in range(2, 16): k.e(f'v_add_f32 v{T+16}, v{T+16}, v{T+r}')
    k.e(f'v_cmp_nge_f32 vcc, {f32(thr)}, v{T+16}')
    k.e('s_cmp_lg_u64 vcc, 0'); k.e('s_cselect_b32 s14, 1, 0'); k.e(f'v_mov_b32 v{T+17}, s14')
    k.e(f'ds_write_b32 v11, v{T+17}')
    O = 16
    for r in range(32): k.e(f'v_accvgpr_read_b32 v{O+r}, a{A_O+r}')
    k.barrier()
    k.e(f'ds_read_b128 v[{T+20}:{T+23}], v12')
    R = [48, 84, 120]
    for j in range(3):
        for i in range(9): k.e(f'ds_read_b128 {v(R[j]+4*i,4)}, v10 offset:{j*9216+i*1024}')
    k.e(f'v_or_b32 v{T+20}, v{T+20}, v{T+21}'); k.e(f'v_or3_b32 v{T+20}, v{T+20}, v{T+22}, v{T+23}')
    k.e(f'v_readfirstlane_b32 s14, v{T+20}')
    k.e('s_andn2_b32 s14, s14, s37'); k.e('s_cmp_lg_u32 s14, 0'); k.e(f's_cbranch_scc1 {name}_slow')
    for j in range(3):
        for r in range(32): k.e(f'v_add_f32 v{O+r}, v{O+r}, v{R[j]+r}')
        for r in range(4): k.e(f'v_add_f32 v{T+r}, v{T+r}, v{R[j]+32+r}')
    for qb in range(2):
        k.e(f'v_add_f32 v{T+2*qb}, v{T+2*qb}, v{T+2*qb+1}'); k.e(f'v_rcp_f32 v{T+2*qb}, v{T+2*qb}')
    k.e('s_cmp_ge_u32 s33, 250'); k.e(f's_cbranch_scc1 {name}_end')
    for qb in range(2):
        for ks in range(2):
            F = 48 + (qb * 2 + ks) * 4
            for h in range(2):
                x = O + 4 * (2 * (2 * ks + h) + qb)
                for r in range(4): k.e(f'v_mul_f32 v{x+r}, v{x+r}, v{T+2*qb}')
                for q in range(2): k.e(f'v_cvt_pk_bf16_f32 v{F+2*h+q}, v{x+2*q}, v{x+2*q+1}')
            k.e(f'buffer_store_dwordx4 {v(F,4)}, v{V_L16}, {ws}, s{35+qb} offen offset:{ks*1024}')
    k.e(f'{name}_end:')
    k.e('s_endpgm')
    k.e(f'{name}_slow:')
    k.fence()
    k.e('s_barrier')
    MX = T
    for r in range(8): k.e(f'v_mov_b32 v{MX+r}, 0xff800000')
    k.e('s_mov_b32 s31, s28'); k.e('s_mov_b32 s32, 0')
    k.loop_begin()
    k.e(f'{name}_mloop:')
    k.add(ldK(0, 31))
    for j in range(4):
        for ks in range(2):
            for kb in range(2):
                for qb in range(2):
                    d = S[0] + 4 * (2 * qb + kb); c = '0' if ks == 0 else v(d, 4)
                    k.e(f'v_mfma_f32_16x16x32_bf16 {v(d,4)}, {v(KV[0]+8*kb+4*ks,4)}, {a(A_Q+16*j+8*qb+4*ks,4)}, {c}')
        for qb in range(2):
            for i in range(4): k.e(f'v_max3_f32 v{MX+2*j+qb}, v{MX+2*j+qb}, v{S[0]+8*qb+2*i}, v{S[0]+8*qb+2*i+1}')
    k.e('s_lshl_b32 s14, s32, 13'); k.e('s_add_u32 s31, s29, s14')
    k.e('s_add_u32 s32, s32, 1'); k.e('s_cmp_le_u32 s32, 31'); k.e(f's_cbranch_scc1 {name}_mloop')
    k.loop_end()
    for r in range(8):
        k.e(f'v_mov_b32 v{MX+8}, v{MX+r}'); k.e(f'v_permlane32_swap_b32 v{MX+r}, v{MX+8}'); k.e(f'v_max_f32 v{MX+r}, v{MX+r}, v{MX+8}')
        k.e(f'v_mov_b32 v{MX+8}, v{MX+r}'); k.e(f'v_permlane16_swap_b32 v{MX+r}, v{MX+8}'); k.e(f'v_max_f32 v{MX+r}, v{MX+r}, v{MX+8}')
    for j in range(4):
        k.e(f's_add_u32 s14, s3, {j}'); k.e('s_and_b32 s14, s14, 3'); k.e('s_lshl_b32 s14, s14, 11')
        k.e(f'v_add_u32 v{MX+10+j}, s14, v{V_L16}')
        k.e('s_lshl_b32 s14, s3, 2'); k.e(f'v_add_u32 v{MX+9}, s14, v{MX+10+j}')
        for qb in range(2): k.e(f'ds_write_b32 v{MX+9}, v{MX+2*j+qb} offset:{qb*1024}')
    k.barrier()
    for j in range(4):
        for qb in range(2):
            b = NM + 8 * j + 4 * qb
            k.e(f'ds_read_b128 {v(b,4)}, v{MX+10+j} offset:{qb*1024}')
            k.e(f'v_max3_f32 v{b}, v{b}, v{b+1}, v{b+2}'); k.e(f'v_max_f32 v{b}, v{b}, v{b+3}'); k.e(f'v_sub_f32 v{b}, 0, v{b}')
            for r in range(1, 4): k.e(f'v_mov_b32 v{b+r}, v{b}')
    k.e('s_mov_b32 s37, 1')
    k.fence()
    k.e('s_barrier')
    k.e(f's_branch {name}_main')
    return k

if __name__ == '__main__':
    k = gen_k2(); t = k.finish(); print(k.stats())
    i = t.index('k2_kernel_loop:'); print('\n'.join(t[i:i+100]))
```

```python
from common import *

def gen_k3(name='k3_kernel', prefetch=True):
    k = Kern(name)
    S_O, S_P1, S_DW, S_P2, S_A, S_B, S_OUT, S_WS = 8, 12, 16, 20, 44, 48, 52, 24
    V_DMA, V_TR, V_FRD, V_FWR, V_SWR, V_SRD, V_L16 = 10, 22, 26, 27, 29, 30, 31
    XC = 32
    R0, R1, R2 = 64, 128, 160
    T = 192
    A_XN, A_W, A_HB, A_DW = 0, 128, 160, 176
    k.e('s_cmp_ge_u32 s2, 250'); k.e(f's_cbranch_scc1 {name}_end')
    k.e('s_load_dwordx8 s[64:71], s[0:1], 32'); k.e('s_load_dwordx4 s[72:75], s[0:1], 64'); k.e('s_load_dwordx2 s[76:77], s[0:1], 80'); k.e('s_load_dwordx2 s[78:79], s[0:1], 96')
    k.e('v_and_b32 v1, 63, v0'); k.e('v_lshrrev_b32 v2, 6, v0'); k.e('v_readfirstlane_b32 s3, v2')
    setup_lane_regs(k, [2048, 512, 1024], V_DMA, V_TR, V_FRD, V_FWR, V_SWR, V_SRD, V_L16, [4, 2])
    k.e('s_lshr_b32 s6, s2, 3'); k.e('s_and_b32 s6, s6, 3')
    order = ff_unit_bases(k, 34, 6, 3, 29)
    k.e('s_lshl_b32 s30, s3, 7'); k.e('s_add_u32 s31, s30, 512')
    k.e('s_cmp_ge_u32 s2, 125'); k.e('s_cselect_b32 s4, 125, 0'); k.e('s_sub_u32 s4, s2, s4')
    k.e('s_lshl_b32 s5, s2, 1')
    k.e('s_cmp_eq_u32 s4, 0'); k.e('s_cselect_b32 s60, 0, -1'); k.e('s_cselect_b32 s7, 0, 1'); k.e('s_sub_u32 s56, s5, s7')
    k.e('s_mov_b32 s57, s5'); k.e('s_add_u32 s58, s5, 1')
    k.e('s_cmp_eq_u32 s4, 124'); k.e('s_cselect_b32 s61, 0, -1'); k.e('s_cselect_b32 s7, 1, 2'); k.e('s_add_u32 s59, s5, s7')
    for tb in range(4): k.e(f's_lshl_b32 s{56+tb}, s{56+tb}, 13')
    k.e('s_lshl_b32 s7, s3, 11')
    for tb in range(4): k.e(f's_add_u32 s{56+tb}, s{56+tb}, s7')
    k.e('s_waitcnt lgkmcnt(0)')
    srd(k, S_O, 64, 131072); srd(k, S_P1, 66, 262144); srd(k, S_DW, 68, 15872); srd(k, S_P2, 70, 131072)
    srd(k, S_A, 72, 524288); srd(k, S_B, 74, 524288); srd(k, S_OUT, 76, 4096000); srd(k, S_WS, 78, WS_SIZE)
    ws = f's[{S_WS}:{S_WS+3}]'
    k.e('s_lshl_b32 s7, s3, 13'); k.e(f's_add_u32 s7, s7, {ACT0}')
    for tb in range(4):
        for j in range(2):
            k.e(f's_add_u32 m0, s7, {(j*4+tb)*1024}'); k.e(f's_add_u32 s29, s{56+tb}, {ATT_OFF + j*1024}')
            k.e(f'buffer_load_dwordx4 v{V_L16}, {ws}, s29 offen lds', tok='att')
    for tb in range(4):
        for hf in range(2):
            r = R1 + (tb * 2 + hf) * 4
            k.e(f'buffer_load_dwordx4 {v(r,4)}, v{V_L16}, {ws}, s{56+tb} offen offset:{X1_OFF + hf*1024}')
    units = [(S_O, V_DMA + 4, 30, 512), (S_P1, V_DMA + 8, 31, 1024), (S_P1, V_DMA + 8, 30, 1024), (S_P2, V_DMA + 4, 30, 512)]
    units += [((S_A, V_DMA, 34 + i, 2048) if t == 'A' else (S_B, V_DMA + 4, 34 + i, 512)) for i, (t, j) in enumerate(order)]
    st = Stream(k, units, 28, 29, V_TR, A_W)
    st.prime()
    k.e('v_lshlrev_b32 v7, 1, v1')
    k.e(f'v_mov_b32 v{T+31}, 0')
    for i in range(31):
        if i % 8 == 0: k.e(f's_add_u32 s29, s30, {(i // 8) * 4096}')
        k.e(f'buffer_load_ushort v{T+i}, v7, s[{S_DW}:{S_DW+3}], s29 offen offset:{(i % 8) * 512}')
    if prefetch: l2_prefetch(k, [(S_O, 131072), (S_P1, 262144), (S_P2, 131072), (S_A, 524288), (S_B, 524288)], 8, 250, 42)
    X4 = lambda nb, tb: R0 + (nb * 4 + tb) * 4
    k.e('s_mov_b32 s43, 0xffff0000')
    for tb in range(4):
        for hf in range(2):
            r = R1 + (tb * 2 + hf) * 4
            for h in range(2):
                for q in range(2):
                    k.e(f'v_lshlrev_b32 v{X4(2*hf+h,tb)+2*q}, 16, v{r+2*h+q}'); k.e(f'v_and_b32 v{X4(2*hf+h,tb)+2*q+1}, s43, v{r+2*h+q}')
    k.e('s_barrier', waits=['att'])
    for i in range(32): k.e(f'ds_read_b128 {a(A_XN+4*i,4)}, v{V_FRD} offset:{i*1024}')
    k.add(st.reads(0))
    xn4 = lambda ks, tb: a(A_XN + (ks * 4 + tb) * 4, 4)
    f = [I(f'v_lshl_or_b32 v{T+2*m}, v{T+2*m+1}, 16, v{T+2*m}') for m in range(16)]
    f += [I(f'v_accvgpr_write_b32 a{A_DW+m}, v{T+2*m}') for m in range(16)]
    st.unit(0, 4, X4, xn4, init='acc', fills=f)
    XCf = lambda nb, tb: XC + (nb * 2 + tb) * 4
    for nb in range(4):
        for tb in range(2):
            for r in range(4): k.e(f'v_mov_b32 v{XCf(nb,tb)+r}, v{X4(nb,tb+1)+r}')
    ln_to_frags(k, X4, 4, T, V_SWR, V_SRD, V_FWR, V_FRD, ACT0, A_XN, scale=-LOG2E)
    GB = lambda nb, tb: R0 + (nb * 4 + tb) * 4
    GA = lambda nb, tb: R1 + (nb * 4 + tb) * 4
    st.unit(1, 4, GB, xn4, swap=True)
    k.barrier()
    f = []
    for b in range(R0, R0 + 64, 4):
        f += [I(f'v_exp_f32 v{b+r}, v{b+r}') for r in range(4)]
        f += [I(f'v_add_f32 v{b+r}, 1.0, v{b+r}') for r in range(4)]
        f += [I(f'v_rcp_f32 v{b+r}, v{b+r}') for r in range(4)]
    st.unit(2, 4, GA, xn4, swap=True, fills=f)
    Eb = T
    ER = lambda tb, pr, j: Eb + 8 * tb + 2 * j + pr
    for tb in range(4):
        for nb in range(4):
            for r in range(4): k.e(f'v_mul_f32 v{GA(nb,tb)+r}, v{GA(nb,tb)+r}, v{GB(nb,tb)+r}')
            for pr in range(2):
                k.e(f'v_cvt_pk_bf16_f32 v{ER(tb,pr,nb)}, v{GA(nb,tb)+2*pr}, v{GA(nb,tb)+2*pr+1}')
                if tb in (0, 3): k.e(f'v_and_b32 v{ER(tb,pr,nb)}, s{60 if tb == 0 else 61}, v{ER(tb,pr,nb)}')
    W0, W1, C = R0, R0 + 16, R0 + 32
    for m in range(16): k.e(f'v_accvgpr_read_b32 v{W0+m}, a{A_DW+m}')
    for tb in range(4):
        for pr in range(2):
            k.e(f'v_permlane32_swap_b32 v{ER(tb,pr,0)}, v{ER(tb,pr,2)}'); k.e(f'v_permlane32_swap_b32 v{ER(tb,pr,1)}, v{ER(tb,pr,3)}')
    for tb in range(4):
        for pr in range(2):
            k.e(f'v_permlane16_swap_b32 v{ER(tb,pr,0)}, v{ER(tb,pr,1)}'); k.e(f'v_permlane16_swap_b32 v{ER(tb,pr,2)}, v{ER(tb,pr,3)}')
    k.e(f'v_lshlrev_b32 v{W1}, 16, v{W0}')
    for m in range(1, 16): k.e(f'v_alignbit_b32 v{W1+m}, v{W0+m}, v{W0+m-1}, 16')
    for m in range(16):
        for t in range(32):
            e_, w_ = (Eb + (t + 1) // 2 + m, W0 + m) if t & 1 else (Eb + t // 2 + m, W1 + m)
            k.e(f'v_dot2_f32_bf16 v{C+t}, v{e_}, v{w_}, 0' if m == 0 else f'v_dot2c_f32_bf16 v{C+t}, v{e_}, v{w_}')
    k.e('s_lshl_b32 s7, s3, 12'); k.e(f's_add_u32 s7, s7, {ACT0}')
    k.e('v_lshlrev_b32 v2, 6, v1'); k.e('v_add_u32 v2, s7, v2')
    k.e('v_bfe_u32 v3, v1, 2, 1'); k.e('v_lshlrev_b32 v3, 5, v3')
    k.e('v_add_u32 v4, v2, v3'); k.e('v_xor_b32 v3, 32, v3'); k.e('v_add_u32 v5, v2, v3')
    for q in range(4):
        t = R1 + 12 * (q & 1); x = C + 8 * q
        for r in range(8): k.e(f'v_exp_f32 v{t+r}, v{x+r}')
        for r in range(8): k.e(f'v_add_f32 v{t+r}, 1.0, v{t+r}')
        for r in range(8): k.e(f'v_rcp_f32 v{t+r}, v{t+r}')
        for r in range(8): k.e(f'v_mul_f32 v{t+r}, v{x+r}, v{t+r}')
        for r in range(4): k.e(f'v_cvt_pk_bf16_f32 v{t+8+r}, v{t+2*r}, v{t+2*r+1}')
        k.e(f'ds_write_b128 v{4 + (q >> 1)}, {v(t+8,4)} offset:{(q & 1) * 16}')
    k.e('v_lshrrev_b32 v2, 2, v1'); k.e('v_lshlrev_b32 v2, 6, v2'); k.e('v_and_b32 v3, 3, v1'); k.e('v_lshl_add_u32 v2, v3, 3, v2')
    k.e(f'v_add_u32 v2, {ACT0}, v2'); k.e('v_bfe_u32 v3, v1, 4, 1'); k.e('v_lshlrev_b32 v3, 5, v3')
    k.e('v_add_u32 v6, v2, v3'); k.e('v_xor_b32 v3, 32, v3'); k.e('v_add_u32 v7, v2, v3')
    k.barrier()
    for ks in range(8):
        for tb in range(2):
            r = A_XN + (ks * 2 + tb) * 4
            k.e(f'ds_read_b64_tr_b16 {a(r,2)}, v{6+tb} offset:{ks*2048}'); k.e(f'ds_read_b64_tr_b16 {a(r+2,2)}, v{6+tb} offset:{ks*2048+1024}')
    xn2 = lambda ks, tb: a(A_XN + (ks * 2 + tb) * 4, 4)
    A2 = lambda nb, tb: R1 + (nb * 2 + tb) * 4
    st.unit(3, 2, A2, xn2)
    k.e(f's_mov_b32 s43, {f32(-LN2)}')
    for i in range(32): k.e(f'v_fmac_f32 v{XC+i}, s43, v{R1+i}')
    ln_to_frags(k, XCf, 2, T, V_SWR, V_SRD, V_FWR + 1, V_FRD, ACT1, A_XN, scale=-LOG2E)
    ffn(k, st, 4, 2, A_XN, A_HB, R0, R0 + 32, R1, T, V_FWR + 1, V_FRD, ACT0, ACT1)
    k.e(f's_mov_b32 s43, {f32(-0.5 * LN2)}')
    for i in range(32): k.e(f'v_fmac_f32 v{XC+i}, s43, v{R1+i}')
    k.e('v_and_b32 v7, 15, v1'); k.e('v_lshlrev_b32 v7, 9, v7')
    k.e('v_bfe_u32 v8, v1, 4, 1'); k.e('v_lshl_add_u32 v7, v8, 5, v7')
    k.e('v_lshrrev_b32 v8, 5, v1'); k.e('v_lshl_add_u32 v7, v8, 4, v7')
    k.e('s_lshl_b32 s5, s2, 14'); k.e('s_add_u32 s4, s30, s5'); k.e('s_add_u32 s5, s4, 8192')
    rs, nm = ln_stats(k, XCf, 2, T, V_SWR, V_SRD)
    for tb in range(2):
        for p in range(2):
            y = R0 + (tb * 2 + p) * 12
            for h in range(2):
                for r in range(4): k.e(f'v_fma_f32 v{y+4*h+r}, v{XCf(2*p+h,tb)+r}, v{rs(tb)}, v{nm(tb)}')
            for q in range(4): k.e(f'v_cvt_pk_bf16_f32 v{y+8+q}, v{y+2*q}, v{y+2*q+1}')
            k.e(f'v_permlane16_swap_b32 v{y+8}, v{y+10}'); k.e(f'v_permlane16_swap_b32 v{y+9}, v{y+11}')
            k.e(f'buffer_store_dwordx4 {v(y+8,4)}, v7, s[{S_OUT}:{S_OUT+3}], s{4+tb} offen offset:{64*p}')
    k.e(f'{name}_end:')
    k.e('s_endpgm')
    return k

if __name__ == '__main__':
    k = gen_k3(); t = k.finish(); print(k.stats())
```

```python
import sys
from common import *
from k1 import gen_k1
from k2 import gen_k2, LDS_ATT
from k3 import gen_k3

def build(launch=('k1', 'k2', 'k3'), **kw):
    ref = open('standalone__conformer_family_zipformer__speech.s.ref').read().split('\n')
    head = [l for l in ref[:15] if l.startswith(';') and '@launch' not in l]
    spec = {'k1': (250, LDS_ROW), 'k2': (256, LDS_ATT), 'k3': (250, LDS_ROW)}
    out = head + [f'; @launch kernel={n}_kernel grid=({spec[n][0]},1,1) block=(256,1,1) lds={spec[n][1]}' for n in launch]
    out.append('.amdgcn_target "amdgcn-amd-amdhsa--gfx950"')
    ks = [gen_k1(**kw.get('k1', {})), gen_k2(**kw.get('k2', {})), gen_k3(**kw.get('k3', {}))]
    ks = [k for k in ks if k.name[:2] in launch]
    for k in ks:
        out += header(k.name) + ['    ' + t if not t.endswith(':') else t for t in k.finish()]
    for k in ks: out += descriptor(k.name)
    return '\n'.join(out) + '\n'

if __name__ == '__main__':
    dst = sys.argv[1] if len(sys.argv) > 1 else 'standalone__conformer_family_zipformer__speech.s'
    open(dst, 'w').write(build())
```
